```python
import torch

def _softmax(x, axis=-1):
    return torch.softmax(x, dim=axis)

def _gelu(x):
    return torch.nn.functional.gelu(x, approximate='tanh')

def _silu(x):
    return torch.nn.functional.silu(x)

def _sigmoid(x):
    return torch.sigmoid(x)

def _layernorm(x, axis=-1, eps=1e-05):
    m = x.mean(dim=axis, keepdim=True)
    v = x.var(dim=axis, keepdim=True, unbiased=False)
    return (x - m) / torch.sqrt(v + eps)

def _scatter_add(tgt, idx, src, axis=0):
    return tgt.clone().index_add_(axis, idx, src)

def _segment_sum(src, seg, n):
    out = torch.zeros((n,) + src.shape[1:], dtype=src.dtype)
    return out.index_add_(0, seg, src)

def _pad(x, pw):
    flat = tuple((v for pair in reversed(pw) for v in pair))
    return torch.nn.functional.pad(x, flat)
kernel_name = 'gated_mix__grouped_kv_mqa__mixer_gmlp__prompt'

def setup_inputs():

    _w = lambda a: (lambda t: t.to(torch.bfloat16) if t.is_floating_point() else t)(torch.as_tensor(a))

    def _A_setup():
        B, S, D, H = (1, 2048, 640, 32)
        Dh = D // H
        return {'x': _w((lambda *s: torch.randn(*s, dtype=torch.bfloat16) * 0.05)(B, S, D)), 'wq': _w((lambda *s: torch.randn(*s, dtype=torch.bfloat16) * 1.6)(D, H * Dh)), 'wk': _w((lambda *s: torch.randn(*s, dtype=torch.bfloat16) * 1.6)(D, Dh)), 'wv': _w((lambda *s: torch.randn(*s, dtype=torch.bfloat16) * 0.2)(D, Dh)), 'wo': _w((lambda *s: torch.randn(*s, dtype=torch.bfloat16) * 0.2)(H * Dh, D))}
    _A_in = _A_setup()

    def _B_setup():
        B, S, D, F = (1, 2048, 640, 1728)
        Fh = F // 2
        return {'x': _w((lambda *s: torch.randn(*s, dtype=torch.bfloat16) * 0.05)(B, S, D)), 'w_in': _w((lambda *s: torch.randn(*s, dtype=torch.bfloat16) * 0.8)(D, 2 * Fh)), 'w_sp': _w(0.01 * (lambda *s: torch.randn(*s, dtype=torch.bfloat16) * 0.8)(S, S)), 'b_sp': _w(1.0 + 0.01 * (lambda *s: torch.randn(*s, dtype=torch.bfloat16) * 0.05)(S)), 'w_out': _w((lambda *s: torch.randn(*s, dtype=torch.bfloat16) * 0.05)(Fh, D))}
    _B_in = _B_setup()
    return {'A_x': _A_in['x'], 'A_wq': _A_in['wq'], 'A_wk': _A_in['wk'], 'A_wv': _A_in['wv'], 'A_wo': _A_in['wo'], 'B_x': _B_in['x'], 'B_w_in': _B_in['w_in'], 'B_w_sp': _B_in['w_sp'], 'B_b_sp': _B_in['b_sp'], 'B_w_out': _B_in['w_out'], 'gate_w': _w((lambda *s: torch.randn(*s, dtype=torch.bfloat16) * 0.05)(640) * 16.0)}

def reference(A_x, A_wq, A_wk, A_wv, A_wo, B_x, B_w_in, B_w_sp, B_b_sp, B_w_out, gate_w):

    def _A_ref(x, wq, wk, wv, wo):
        B, S, D = x.shape
        H = 32
        Dh = D // H
        q = (lambda x, *d: x.permute(*d))((x @ wq).reshape(B, S, H, Dh), 0, 2, 1, 3)
        k = x @ wk
        v = x @ wv
        scores = torch.einsum('bhqd,bkd->bhqk', q, k) * Dh ** (-0.5)
        p = _softmax(scores, axis=-1)
        o = torch.einsum('bhqk,bkd->bhqd', p, v)
        return (lambda x, *d: x.permute(*d))(o, 0, 2, 1, 3).reshape(B, S, H * Dh) @ wo

    def _B_ref(x, w_in, w_sp, b_sp, w_out):
        B, S, D = x.shape
        F = w_in.shape[-1]
        Fh = F // 2
        z = _gelu(torch.einsum('bsd,df->bsf', x, w_in))
        z1 = z[..., :Fh].clone()
        z2 = _layernorm(z[..., Fh:], axis=-1)
        g = torch.einsum('ts,bsf->btf', w_sp, z2) + b_sp[None, :, None]
        return torch.einsum('bsf,fd->bsd', z1 * g, w_out)
    x = A_x
    g = _sigmoid((x * gate_w).sum(-1, keepdims=True))
    a = _A_ref(x, A_wq, A_wk, A_wv, A_wo)
    b = _B_ref(x, B_w_in, B_w_sp, B_b_sp, B_w_out)
    return g * a + (1 - g) * b
```

```python
import re

def regs_of(tok):
    tok = tok.strip()
    tok = re.sub(r'^-|^\|', '', tok)
    tok = tok.replace('abs(', '').replace(')', '').replace('|', '')
    m = re.fullmatch(r'([vas])(\d+)', tok)
    if m: return [(m.group(1), int(m.group(2)))]
    m = re.fullmatch(r'([vas])\[(\d+):(\d+)\]', tok)
    if m: return [(m.group(1), i) for i in range(int(m.group(2)), int(m.group(3)) + 1)]
    if tok == 'vcc': return [('s', 106), ('s', 107)]
    if tok == 'exec': return [('s', 126), ('s', 127)]
    if tok == 'm0': return [('s', 124)]
    return []

TRANS = ('v_exp_f32', 'v_log_f32', 'v_rcp_f32', 'v_rsq_f32', 'v_sqrt_f32', 'v_sin_f32', 'v_cos_f32')

class Ins:
    def __init__(self, text):
        self.text = text
        t = text.split(';')[0].strip()
        self.label = t.endswith(':')
        self.directive = t.startswith('.')
        self.empty = (t == '')
        self.op = ''
        self.dst = []; self.src = []; self.srcC = []; self.srcAB = []
        self.kind = 'none'
        if self.label or self.directive or self.empty: return
        parts = t.split(None, 1)
        self.op = op = parts[0]
        rest = parts[1] if len(parts) > 1 else ''
        ops = [o.strip() for o in re.split(r',(?![^\[]*\])', rest)] if rest else []
        mods = ''
        if ops:
            sp = ops[-1].split(None, 1)
            if len(sp) > 1: ops[-1] = sp[0]; mods = sp[1]
        self.mods = mods
        self.ops = ops
        R = lambda i: regs_of(ops[i]) if i < len(ops) else []
        if op.startswith('v_mfma'):
            self.kind = 'mfma'
            self.dst = R(0); self.srcAB = R(1) + R(2); self.srcC = R(3); self.src = self.srcAB + self.srcC
            self.passes = 8 if '32x32' in op else 4
        elif op.startswith('v_'):
            self.kind = 'valu'
            self.trans = any(op.startswith(x) for x in TRANS)
            self.dpp = ('dpp' in op) or ('row_' in mods) or ('quad_perm' in mods)
            if op.startswith('v_permlane') and 'swap' in op:
                self.dst = R(0) + R(1); self.src = R(0) + R(1)
            elif op.startswith(('v_add_co', 'v_sub_co', 'v_addc_co', 'v_subb_co')):
                self.dst = R(0) + R(1); self.src = sum([R(i) for i in range(2, len(ops))], [])
            else:
                self.dst = R(0); self.src = sum([R(i) for i in range(1, len(ops))], [])
                if op.startswith(('v_fmac', 'v_pk_fmac', 'v_dot2c', 'v_writelane')) or self.dpp or 'sdwa' in op: self.src = self.src + self.dst
                if op.startswith('v_cmpx'): self.dst = self.dst + regs_of('exec')
        elif op.startswith('ds_'):
            self.kind = 'ds'
            if 'read' in op or 'permute' in op or 'swizzle' in op:
                self.dst = R(0); self.src = sum([R(i) for i in range(1, len(ops))], [])
            else:
                self.src = sum([R(i) for i in range(len(ops))], [])
        elif op.startswith(('buffer_', 'global_')):
            self.kind = 'vmem'
            self.lds = bool(re.search(r'\blds\b', mods))
            self.store = 'store' in op or ('atomic' in op)
            if op.startswith('buffer_') and ('wbl2' in op or 'inv' in op):
                pass
            elif 'load' in op and not self.lds:
                self.dst = R(0); self.src = sum([R(i) for i in range(1, len(ops))], [])
            else:
                self.src = sum([R(i) for i in range(len(ops))], [])
                if self.lds: self.src = self.src + regs_of('m0')
                if 'atomic' in op and 'sc0' in mods: self.dst = R(0)
            self.wide = self.store and ('x4' in op or 'x3' in op)
            if self.store:
                self.data = R(0) if op.startswith('buffer_') else R(1)
        elif op.startswith('s_'):
            self.kind = 'salu'
            if op.startswith(('s_load', 's_buffer_load', 's_memtime', 's_memrealtime')): self.kind = 'smem'
            if op in ('s_nop',): self.kind = 'nop'
            if not op.startswith(('s_cmp', 's_cbranch', 's_branch', 's_waitcnt', 's_barrier', 's_nop', 's_endpgm', 's_setprio', 's_sleep')):
                self.dst = R(0); self.src = sum([R(i) for i in range(1, len(ops))], [])
                if 'saveexec' in op: self.dst = self.dst + regs_of('exec')
            else:
                self.src = sum([R(i) for i in range(len(ops))], [])
    def states(self):
        if self.label or self.directive or self.empty: return 0
        if self.op == 's_nop': return int(self.ops[0], 0) + 1
        return 1

def need(p, c):
    n = 0
    S = set
    vec = lambda l: [r for r in l if r[0] in 'va']
    sca = lambda l: [r for r in l if r[0] == 's']
    if p.kind == 'valu':
        pd = S(vec(p.dst)); ps = S(sca(p.dst))
        if c.kind == 'mfma' and pd & S(c.src): n = max(n, 2)
        if c.kind == 'valu':
            if getattr(p, 'trans', False) and not c.trans and pd & S(c.src): n = max(n, 1)
            if c.dpp and pd & S(c.src): n = max(n, 2)
            if c.op.startswith('v_permlane') and pd & S(c.src): n = max(n, 2)
            if c.op.startswith(('v_readlane', 'v_readfirstlane')) and pd & S(c.src): n = max(n, 1)
            csrc = S(c.src)
            if c.op.startswith(('v_cndmask', 'v_addc', 'v_subb')) and len(c.ops) <= 3: csrc |= S(regs_of('vcc'))
            if ps & csrc: n = max(n, 4 if c.op.startswith(('v_readlane', 'v_writelane')) else 2)
            if ('sdwa' in p.op or 'op_sel' in p.mods) and not p.op.startswith('v_pk') and pd & (S(c.src) | S(c.dst)): n = max(n, 1)
            if ps & S(regs_of('exec')) and (c.dpp): n = max(n, 5)
        if getattr(p, 'trans', False) and c.kind in ('ds', 'vmem') and pd & S(c.src): n = max(n, 1)
        if c.kind == 'vmem' and ps & S(c.src): n = max(n, 5)
        if c.kind == 'mfma' and ps & S(regs_of('exec')): n = max(n, 4)
        if c.kind in ('salu', 'smem') and ps & S(c.src): n = max(n, 1)
    if p.kind == 'mfma':
        pd = S(p.dst)
        big = {8: 12, 4: 8}[p.passes]
        if c.kind == 'mfma':
            if pd & S(c.srcAB): n = max(n, big)
            if pd & S(c.srcC):
                if not (c.srcC == p.dst and c.passes == p.passes): n = max(n, {8: 10, 4: 6}[p.passes])
            elif pd & S(c.dst): n = max(n, {8: 10, 4: 6}[p.passes])
        elif c.kind in ('valu', 'ds', 'vmem'):
            if pd & (S(c.src) | S(c.dst)): n = max(n, big)
        if c.kind == 'valu' and S(p.srcC) & S(c.dst): n = max(n, {8: 7, 4: 3}[p.passes])
    if p.kind == 'vmem' and getattr(p, 'wide', False):
        if S(p.data) & S(c.dst): n = max(n, 2 if c.kind == 'valu' else 1)
    if p.kind == 'salu' and S(p.dst) & S(regs_of('m0')):
        if c.kind == 'vmem' and c.lds: n = max(n, 1)
    return n

def fix_hazards(lines, report=None):
    out = []
    for t in lines:
        for sub in t.split('\n'):
            c = Ins(sub)
            if c.states() and c.kind != 'nop':
                dist = 0; worst = 0
                for p in reversed(out[-40:]):
                    if dist >= 20: break
                    if p.states() == 0: continue
                    n = need(p, c)
                    if n > dist and n - dist > worst:
                        worst = n - dist; who = p
                    dist += p.states()
                if worst:
                    if report is not None: report.append((who.text.strip(), c.text.strip(), worst))
                    k = worst
                    while k > 0:
                        j = min(k, 16)
                        out.append(Ins(f'    s_nop {j-1}')); k -= j
            out.append(c)
    return [i.text for i in out]

class Asm:
    def __init__(self):
        self.lines = []
        self.vm = []
        self.lg = []
    def __call__(self, text, tag=None):
        for sub in text.split('\n'):
            s = sub.strip()
            if not s: continue
            if s.endswith(':') or s.startswith('.'): self.lines.append(s)
            else: self.lines.append('    ' + s)
            op = s.split()[0]
            if op.startswith(('buffer_', 'global_')) and not ('wbl2' in op or 'inv' in op): self.vm.append(tag)
            elif op.startswith('ds_'): self.lg.append(tag)
    def wait_vm(self, tag, extra=''):
        idx = [i for i, t in enumerate(self.vm) if t == tag or (isinstance(tag, (list, tuple, set)) and t in tag)]
        if not idx: return False
        n = len(self.vm) - 1 - max(idx)
        assert n <= 63, n
        self.lines.append(f'    s_waitcnt vmcnt({n}){extra}')
        self.vm = self.vm[max(idx) + 1:]
        return True
    def wait_lg(self, tag):
        idx = [i for i, t in enumerate(self.lg) if t == tag or (isinstance(tag, (list, tuple, set)) and t in tag)]
        if not idx: return False
        n = len(self.lg) - 1 - max(idx)
        assert n <= 15, n
        self.lines.append(f'    s_waitcnt lgkmcnt({n})')
        self.lg = self.lg[max(idx) + 1:]
        return True
    def wait_all(self, vm=True, lg=True):
        s = '    s_waitcnt' + (' vmcnt(0)' if vm else '') + (' lgkmcnt(0)' if lg else '')
        self.lines.append(s)
        if vm: self.vm = []
        if lg: self.lg = []
```

```python
import struct, math
WS_QS    = 0x000000
WS_KV    = 0x280000
WS_GATE  = 0x2B0000
WS_KMAX  = 0x2B2000
WS_STATS = 0x2C0000
WS_Z2F   = 0x340000
WS_Z1F   = 0x6C0000
WS_AF    = 0xA40000
WS_SIZE  = 0x1100000
KV_REC = 3072
KV_KA, KV_KB, KV_V0, KV_V1 = 0, 1024, 1536, 2208
def f32(x): return '0x%08x' % struct.unpack('<I', struct.pack('<f', x))[0]
LOG2E = 1.4426950408889634
QSCALE = LOG2E / math.sqrt(20.0)
GELU_C0 = -2.0 * math.sqrt(2.0 / math.pi) * LOG2E
GELU_C1 = GELU_C0 * 0.044715

def srd(A, d, lo, hi, size):
    A(f's_mov_b32 s{d}, s{lo}')
    A(f's_mov_b32 s{d+1}, s{hi}')
    A(f's_mov_b32 s{d+2}, {size}')
    A(f's_mov_b32 s{d+3}, 0x00020000')

def kernel_header(name):
    return f""".globl {name}
.p2align 8
.type {name},@function
{name}:"""

def kernel_desc(name, vgpr, accum, sgpr=102):
    return f""".p2align 6
.amdhsa_kernel {name}
  .amdhsa_next_free_vgpr {vgpr}
  .amdhsa_next_free_sgpr {sgpr}
  .amdhsa_accum_offset {accum}
  .amdhsa_group_segment_fixed_size 0
  .amdhsa_kernarg_size 112
  .amdhsa_user_sgpr_count 2
  .amdhsa_user_sgpr_kernarg_segment_ptr 1
  .amdhsa_system_sgpr_workgroup_id_x 1
.end_amdhsa_kernel"""
```

```python
from asmlib import *
from common import *

NAME = 'k1_proj_kernel'
LDS = 163840
sX, sWin, sB3, sB4, sWs, sDbg, sGw = 24, 28, 32, 36, 40, 44, 48
s_w, s_rt, s_cg = 3, 4, 5
s_f = [52, 53, 54, 55, 56]
s_so = [57, 58, 59, 60, 61]
s_step34, s_xo, s_xl, s_wl, s_pitch, s_wgt, s_tb, s_t0, s_t1, s_t2, s_cls = 62, 63, 64, 65, 66, 67, 68, 69, 70, 71, 72
s_c1 = 73
s_soh = [74, 75]
vLane, vHi, vT = 1, 2, 3
vX = [4, 5, 6, 7]; vW, vW2 = 8, 9
vXr = [10, 11, 12, 13]; vWr, vWr2, vWr3 = 14, 15, 16
vL16, vL8 = 17, 18
RING = 32; NR = 6; D = 5
vC0, vC1, vONE = 56, 58, 60
ACC = [64, 80, 96, 112, 128]
TMP = 144
PK = 176

def gelu_pk(A, acc, tmp):
    P = lambda r: f'v[{r}:{r+1}]'
    for i in range(0, 16, 2): A(f'v_pk_mul_f32 {P(tmp+i)}, {P(acc+i)}, {P(acc+i)}')
    for i in range(0, 16, 2): A(f'v_pk_fma_f32 {P(tmp+i)}, {P(tmp+i)}, {P(vC1)}, {P(vC0)}')
    for i in range(0, 16, 2): A(f'v_pk_mul_f32 {P(tmp+i)}, {P(tmp+i)}, {P(acc+i)}')
    for i in range(16): A(f'v_exp_f32 v{tmp+i}, v{tmp+i}')
    for i in range(0, 16, 2): A(f'v_pk_add_f32 {P(tmp+i)}, {P(tmp+i)}, {P(vONE)}')
    for i in range(16): A(f'v_rcp_f32 v{tmp+i}, v{tmp+i}')
    for i in range(0, 16, 2): A(f'v_pk_mul_f32 {P(acc+i)}, {P(acc+i)}, {P(tmp+i)}')

def gelu_scalar_list(acc, tmp):
    L = []
    for h in range(0, 16, 4):
        R = range(h, h + 4)
        L += [(f'v_mul_f32 v{tmp+i}, v{acc+i}, v{acc+i}', 4) for i in R]
        L += [(f'v_fma_f32 v{tmp+i}, v{tmp+i}, v{vC1}, v{vC0}', 4) for i in R]
        L += [(f'v_mul_f32 v{tmp+i}, v{tmp+i}, v{acc+i}', 4) for i in R]
        L += [(f'v_exp_f32 v{tmp+i}, v{tmp+i}', 8) for i in R]
        L += [(f'v_add_f32 v{tmp+i}, 1.0, v{tmp+i}', 4) for i in R]
        L += [(f'v_rcp_f32 v{tmp+i}, v{tmp+i}', 8) for i in R]
        L += [(f'v_mul_f32 v{acc+i}, v{acc+i}, v{tmp+i}', 4) for i in R]
    return L

def stats_pk(A, acc, s1, s2):
    P = lambda r: f'v[{r}:{r+1}]'
    A(f'v_pk_add_f32 {P(s1)}, {P(acc)}, {P(acc+2)}')
    A(f'v_pk_mul_f32 {P(s2)}, {P(acc)}, {P(acc)}')
    for i in range(2, 16, 2):
        if i >= 4: A(f'v_pk_add_f32 {P(s1)}, {P(s1)}, {P(acc+i)}')
        A(f'v_pk_fma_f32 {P(s2)}, {P(acc+i)}, {P(acc+i)}, {P(s2)}')
    A(f'v_add_f32 v{s1}, v{s1}, v{s1+1}')
    A(f'v_add_f32 v{s2}, v{s2}, v{s2+1}')

def cvt16(A, acc, pk, n=8):
    for j in range(n): A(f'v_cvt_pk_bf16_f32 v{pk+j}, v{acc+2*j}, v{acc+2*j+1}')

def z1_store(A, pk, sfi, tag=None):
    A(f's_mul_i32 s{s_t0}, s{s_tb}, {54*1024}')
    A(f's_lshl_b32 s{s_t1}, s{sfi}, 11')
    A(f's_add_u32 s{s_t0}, s{s_t0}, s{s_t1}')
    A(f's_add_u32 s{s_t0}, s{s_t0}, {WS_Z1F}')
    A(f'buffer_store_dwordx4 v[{pk}:{pk+3}], v{vL16}, s[{sWs}:{sWs+3}], s{s_t0} offen', tag)
    A(f'buffer_store_dwordx4 v[{pk+4}:{pk+7}], v{vL16}, s[{sWs}:{sWs+3}], s{s_t0} offen offset:1024', tag)

def gen():
    A = Asm()
    A(kernel_header(NAME))
    A('s_cmp_ge_u32 s2, 256')
    A('s_cbranch_scc1 K1_end')
    A('s_load_dwordx8 s[8:15], s[0:1], 0')
    A('s_load_dwordx2 s[16:17], s[0:1], 48')
    A('s_load_dwordx2 s[18:19], s[0:1], 80')
    A('s_load_dwordx4 s[20:23], s[0:1], 96')
    A(f'v_and_b32 v{vLane}, 63, v0')
    A(f'v_lshrrev_b32 v19, 6, v0')
    A(f'v_lshrrev_b32 v{vHi}, 5, v{vLane}')
    A(f'v_readfirstlane_b32 s{s_w}, v19')
    A(f'v_and_b32 v{vT}, 31, v{vLane}')
    A(f'v_lshlrev_b32 v{vL16}, 4, v{vLane}')
    A(f'v_lshlrev_b32 v{vL8}, 3, v{vLane}')
    A(f's_and_b32 s{s_t0}, s2, 7')
    A(f's_lshr_b32 s{s_t1}, s2, 3')
    A(f's_and_b32 s{s_rt}, s{s_t0}, 1')
    A(f's_lshl_b32 s{s_rt}, s{s_rt}, 3')
    A(f's_and_b32 s{s_t2}, s{s_t1}, 7')
    A(f's_add_u32 s{s_rt}, s{s_rt}, s{s_t2}')
    A(f's_lshr_b32 s{s_cg}, s{s_t0}, 1')
    A(f's_lshl_b32 s{s_cg}, s{s_cg}, 2')
    A(f's_lshr_b32 s{s_t2}, s{s_t1}, 3')
    A(f's_add_u32 s{s_cg}, s{s_cg}, s{s_t2}')
    A(f's_lshl_b32 s{s_tb}, s{s_rt}, 2')
    A(f's_add_u32 s{s_tb}, s{s_tb}, s{s_w}')
    A(f'v_lshrrev_b32 v19, 3, v{vLane}')
    A(f'v_mul_u32_u24 v19, 1280, v19')
    A(f'v_and_b32 v20, 7, v{vLane}')
    A(f'v_lshrrev_b32 v21, 4, v{vLane}')
    A(f'v_xor_b32 v20, v20, v21')
    A(f'v_lshlrev_b32 v20, 4, v20')
    A(f'v_add_u32 v{vX[0]}, v19, v20')
    A(f'v_xor_b32 v20, 64, v20')
    A(f'v_add_u32 v{vX[1]}, v19, v20')
    A(f'v_add_u32 v{vX[1]}, 10240, v{vX[1]}')
    A(f'v_add_u32 v{vX[2]}, 20480, v{vX[0]}')
    A(f'v_add_u32 v{vX[3]}, 20480, v{vX[1]}')
    A(f's_mul_i32 s{s_xo}, s{s_tb}, {32*1280}')
    A(f's_lshl_b32 s{s_xl}, s{s_w}, 12')
    A(f's_lshl_b32 s{s_wl}, s{s_w}, 10')
    A(f'v_lshrrev_b32 v19, 2, v{vLane}')
    A(f's_lshl_b32 s{s_t0}, s{s_w}, 4')
    A(f'v_add_u32 v19, s{s_t0}, v19')
    A(f'v_and_b32 v20, 3, v{vLane}')
    A(f'v_lshlrev_b32 v20, 4, v20')
    A(f'v_mul_u32_u24 v{vW}, 3456, v19')
    A(f'v_add_u32 v{vW}, v{vW}, v20')
    A(f's_sub_u32 s{s_c1}, s{s_cg}, 11')
    A(f's_mul_i32 s{s_t0}, s{s_c1}, 3')
    A(f's_lshl_b32 s{s_t1}, s{s_cg}, 1')
    A(f's_movk_i32 s{s_pitch}, 1280')
    A(f's_cmp_ge_u32 s{s_cg}, 11')
    A(f's_cselect_b32 s{s_cls}, 2, 0')
    A(f's_cselect_b32 s{s_wgt}, 0, 1.0')
    A(f's_cselect_b32 s{s_pitch}, 3456, s{s_pitch}')
    A(f's_cbranch_scc1 K1_clsC')
    A(f's_mov_b32 s{s_f[0]}, s{s_t1}')
    A(f's_add_u32 s{s_f[1]}, s{s_t1}, 1')
    A(f's_mov_b32 s{s_f[2]}, s{s_cg}')
    A(f's_mov_b32 s{s_f[3]}, s{s_t1}')
    A(f's_add_u32 s{s_f[4]}, s{s_t1}, 1')
    A(f's_lshl_b32 s{s_so[1]}, s{s_f[1]}, 6')
    A(f's_add_u32 s{s_so[1]}, s{s_so[1]}, 1728')
    A(f's_branch K1_cls_done')
    A('K1_clsC:')
    A(f's_add_u32 s{s_f[0]}, s{s_c1}, 22')
    A(f's_add_u32 s{s_f[1]}, s{s_t0}, 11')
    A(f's_add_u32 s{s_f[2]}, s{s_t0}, 12')
    A(f's_add_u32 s{s_f[3]}, s{s_t0}, 13')
    A(f's_mov_b32 s{s_f[4]}, 26')
    A(f's_lshl_b32 s{s_so[1]}, s{s_f[1]}, 6')
    A('K1_cls_done:')
    A(f's_lshl_b32 s{s_so[0]}, s{s_f[0]}, 6')
    A(f's_add_u32 s{s_so[0]}, s{s_so[0]}, 1728')
    A(f's_lshl_b32 s{s_so[2]}, s{s_f[2]}, 6')
    A(f's_lshl_b32 s{s_so[3]}, s{s_f[3]}, 6')
    A(f's_lshl_b32 s{s_so[4]}, s{s_f[4]}, 6')
    A('s_waitcnt lgkmcnt(0)')
    srd(A, sX, 8, 9, 2048*1280)
    srd(A, sWin, 16, 17, 640*3456)
    srd(A, sWs, 22, 23, WS_SIZE)
    srd(A, sDbg, 20, 21, 256)
    srd(A, sGw, 18, 19, 1280)
    A(f's_lshl_b32 s{s_t0}, s2, 3')
    A(f's_lshl_b32 s{s_t1}, s{s_w}, 1')
    A(f's_add_u32 s{s_t0}, s{s_t0}, s{s_t1}')
    A(f'v_add_u32 v22, s{s_t0}, v{vHi}')
    A(f'v_mul_u32_u24 v23, 40, v{vT}')
    A(f'v_mul_u32_u24 v24, 1280, v22')
    A(f'v_add_u32 v24, v24, v23')
    G = 144
    A(f'buffer_load_dwordx4 v[{G}:{G+3}], v24, s[{sX}:{sX+3}], 0 offen', 'g')
    A(f'buffer_load_dwordx4 v[{G+4}:{G+7}], v24, s[{sX}:{sX+3}], 0 offen offset:16', 'g')
    A(f'buffer_load_dwordx2 v[{G+8}:{G+9}], v24, s[{sX}:{sX+3}], 0 offen offset:32', 'g')
    A(f'buffer_load_dwordx4 v[{G+12}:{G+15}], v23, s[{sGw}:{sGw+3}], 0 offen', 'g')
    A(f'buffer_load_dwordx4 v[{G+16}:{G+19}], v23, s[{sGw}:{sGw+3}], 0 offen offset:16', 'g')
    A(f'buffer_load_dwordx2 v[{G+20}:{G+21}], v23, s[{sGw}:{sGw+3}], 0 offen offset:32', 'g')

    def dma_x(c):
        out = []
        for j in range(4):
            g = [f's_add_u32 m0, s{s_xl}, {(c % 4) * 16384 + j * 1024}']
            g.append((f'buffer_load_dwordx4 v{vX[j]}, s[{sX}:{sX+3}], s{s_xo} offen lds', ('x', c)))
            if j == 3: g.append(f's_add_u32 s{s_xo}, s{s_xo}, 128')
            out.append(g)
        return out
    def wloc(u, b, ks):
        if u < 16:
            return 65536 + (u % 8) * 12288 + b * 4096 + ks * 1024
        v = u - 16
        return (2 + v // 2) * 16384 + ks * 4096 + ((v % 2) * 2 + b) * 1024
    def dma_w(u):
        out = []
        if u < 10:
            for b in range(3):
                g = [f's_add_u32 m0, s{s_wl}, {wloc(u, b, 0)}']
                g.append(f's_add_u32 s{s_so[b]}, s{s_so[b]}, {64*3456 if u else 0}')
                g.append((f'buffer_load_dwordx4 v{vW}, s[{sWin}:{sWin+3}], s{s_so[b]} offen lds', ('w', u)))
                out.append(g)
        else:
            for b in range(2):
                base = s_wl if u < 16 else s_xl
                so = s_so[3+b] if u < 16 else s_soh[b]
                sb = (sB3, sB4)[b]
                g = [f's_add_u32 m0, s{base}, {wloc(u, b, 0)}']
                g.append(f's_add_u32 s{so}, s{so}, ' + (f's{s_step34}' if u not in (10, 16) else '0'))
                g.append((f'buffer_load_dwordx4 v{vW2}, s[{sb}:{sb+3}], s{so} offen lds', ('w', u)))
                out.append(g)
        return out
    def emit_group(g):
        for x in g:
            if isinstance(x, tuple): A(x[0], x[1])
            else: A(x)
    for c in range(4):
        for g in dma_x(c): emit_group(g)
        for g in dma_w(c): emit_group(g)
    for u in range(4, 8):
        for g in dma_w(u): emit_group(g)
    A(f's_cmp_eq_u32 s{s_cg}, 10')
    A(f's_cselect_b32 s{s_cls}, 1, s{s_cls}')
    A(f's_cselect_b32 s{s_pitch}, 40, s{s_pitch}')
    A(f's_cselect_b32 s{s_so[3]}, 0, s{s_so[3]}')
    A(f's_cselect_b32 s{s_so[4]}, 0, s{s_so[4]}')
    A(f's_cselect_b32 s{sB3}, s12, s10')
    A(f's_cselect_b32 s{sB3+1}, s13, s11')
    A(f's_cselect_b32 s{sB4}, s14, s10')
    A(f's_cselect_b32 s{sB4+1}, s15, s11')
    A(f's_cmp_ge_u32 s{s_cg}, 11')
    A(f's_cselect_b32 s{sB3}, s16, s{sB3}')
    A(f's_cselect_b32 s{sB3+1}, s17, s{sB3+1}')
    A(f's_cselect_b32 s{sB4}, s16, s{sB4}')
    A(f's_cselect_b32 s{sB4+1}, s17, s{sB4+1}')
    A(f's_mul_i32 s{sB3+2}, s{s_pitch}, 640')
    A(f's_mov_b32 s{sB4+2}, s{sB3+2}')
    A(f's_mov_b32 s{sB3+3}, 0x00020000')
    A(f's_mov_b32 s{sB4+3}, 0x00020000')
    A(f's_lshl_b32 s{s_step34}, s{s_pitch}, 6')
    A(f's_mul_i32 s{s_t0}, s{s_step34}, 6')
    A(f's_add_u32 s{s_soh[0]}, s{s_so[3]}, s{s_t0}')
    A(f's_add_u32 s{s_soh[1]}, s{s_so[4]}, s{s_t0}')
    A(f'v_mul_u32_u24 v{vW2}, s{s_pitch}, v19')
    A(f'v_add_u32 v{vW2}, v{vW2}, v20')
    A(f'v_lshrrev_b32 v19, 1, v{vT}')
    A(f'v_and_b32 v19, 7, v19')
    A(f'v_lshlrev_b32 v20, 7, v{vT}')
    A(f'v_add_u32 v20, s{s_xl}, v20')
    for ks in range(4):
        A(f'v_add_u32 v21, {2*ks}, v{vHi}')
        A(f'v_xor_b32 v21, v21, v19')
        A(f'v_lshl_add_u32 v{vXr[ks]}, v21, 4, v20')
    A(f'v_lshlrev_b32 v19, 9, v{vHi}')
    A(f'v_bfe_u32 v20, v{vLane}, 2, 2')
    A(f'v_lshl_add_u32 v19, v20, 6, v19')
    A(f'v_bfe_u32 v20, v{vLane}, 4, 1')
    A(f'v_lshl_add_u32 v19, v20, 5, v19')
    A(f'v_and_b32 v20, 3, v{vLane}')
    A(f'v_lshl_add_u32 v{vWr3}, v20, 3, v19')
    A(f'v_add_u32 v{vWr}, 65536, v{vWr3}')
    A(f'v_add_u32 v{vWr2}, {65536+49152}, v{vWr3}')
    for r, val in ((vC0, f32(GELU_C0)), (vC1, f32(GELU_C1)), (vONE, '1.0')):
        A(f'v_mov_b32 v{r}, {val}'); A(f'v_mov_b32 v{r+1}, {val}')
    A.wait_vm('g')
    A(f'v_mov_b32 v25, 0')
    A(f'v_mov_b32 v26, 0')
    for j in range(10):
        A(f'v_dot2_f32_bf16 v{25 + j % 2}, v{G+j}, v{G+12+j}, v{25 + j % 2}')
    A('s_nop 2')
    A(f'v_add_f32 v25, v25, v26')
    for sh in (1, 2, 4, 8):
        A(f'v_add_f32_dpp v25, v25, v25 row_shr:{sh} row_mask:0xf bank_mask:0xf bound_ctrl:0')
    A(f'v_add_f32_dpp v25, v25, v25 row_bcast:15 row_mask:0xa bank_mask:0xf')
    A(f'v_mul_f32 v25, {f32(-LOG2E)}, v25')
    A(f'v_exp_f32 v25, v25')
    A(f'v_add_f32 v25, 1.0, v25')
    A(f'v_rcp_f32 v25, v25')
    A(f'v_lshlrev_b32 v22, 2, v22')
    A(f's_mov_b32 s{s_t0}, {WS_GATE}')
    A('s_mov_b32 exec_lo, 0x80000000')
    A('s_mov_b32 exec_hi, 0x80000000')
    A(f'buffer_store_dword v25, v22, s[{sWs}:{sWs+3}], s{s_t0} offen', 'gs')
    A('s_mov_b64 exec, -1')

    seq = [(c, ks, b) for c in range(10) for ks in range(4) for b in range(3)]
    seq2 = [(10 + c, ks, b) for c in range(10) for ks in range(4) for b in range(2)]
    extra = []
    def reads(i, m):
        u, ks, b = m
        if u < 10 and ks == 0 and b == 0:
            A.wait_vm([('x', u), ('w', u)])
            A('s_barrier')
            if u >= 2: extra.extend(dma_w(u + 6))
        r = RING + 4 * (i % NR)
        if u < 10 and b == 0:
            A(f'ds_read_b128 a[{16*u+4*ks}:{16*u+4*ks+3}], v{vXr[ks]} offset:{(u % 4) * 16384}', i)
        loc = wloc(u, b, ks)
        if loc >= 65536 + 49152: base, off = vWr2, loc - 65536 - 49152
        elif loc >= 65536: base, off = vWr, loc - 65536
        else: base, off = vWr3, loc
        A(f'ds_read_b64_tr_b16 v[{r}:{r+1}], v{base} offset:{off}', i)
        A(f'ds_read_b64_tr_b16 v[{r+2}:{r+3}], v{base} offset:{off+256}', i)
    def mfma(i, m):
        u, ks, b = m
        c = u % 10
        bb = b if u < 10 else 3 + b
        r = RING + 4 * (i % NR)
        acc = ACC[bb]
        cin = '0' if (c == 0 and ks == 0) else f'v[{acc}:{acc+15}]'
        A(f'v_mfma_f32_32x32x16_bf16 v[{acc}:{acc+15}], v[{r}:{r+3}], a[{16*c+4*ks}:{16*c+4*ks+3}], {cin}')
    for i in range(D): reads(i, seq[i])
    for i, m in enumerate(seq):
        A.wait_lg(i)
        mfma(i, m)
        if i + D < len(seq): reads(i + D, seq[i + D])
        u, ks, b = m
        if ks == 3 and b == 0:
            if u + 4 < 10: extra.extend(dma_x(u + 4))
            elif u in (6, 7):
                extra.extend(dma_w(16 + 2 * (u - 6))); extra.extend(dma_w(17 + 2 * (u - 6)))
        if extra: emit_group(extra.pop(0))
    while extra: emit_group(extra.pop(0))
    S1a, S2a, S1b, S2b = 20, 22, 24, 26
    gelu_pk(A, ACC[0], TMP)
    stats_pk(A, ACC[0], S1a, S2a)
    gelu_pk(A, ACC[1], TMP)
    A.wait_all(vm=True, lg=False)
    A('s_barrier')
    N1 = len(seq)
    for i in range(D): reads(N1 + i, seq2[i])
    stats_pk(A, ACC[1], S1b, S2b)
    A(f'v_fma_f32 v28, s{s_wgt}, v{S1b}, v{S1a}')
    A(f'v_fma_f32 v29, s{s_wgt}, v{S2b}, v{S2a}')
    A(f's_lshl_b32 s{s_t0}, s{s_tb}, 13')
    A(f's_add_u32 s{s_t2}, s{s_t0}, {WS_STATS}')
    A(f's_lshl_b32 s{s_t1}, s{s_cg}, 9')
    A(f's_add_u32 s{s_t0}, s{s_t2}, s{s_t1}')
    A(f'buffer_store_dwordx2 v[28:29], v{vL8}, s[{sWs}:{sWs+3}], s{s_t0} offen sc1', 'st')
    fill = gelu_scalar_list(ACC[2], TMP) + [(f'v_cvt_pk_bf16_f32 v{PK+j}, v{ACC[2]+2*j}, v{ACC[2]+2*j+1}', 4) for j in range(8)]
    z1done = False
    for j, m in enumerate(seq2):
        i = N1 + j
        A.wait_lg(i)
        mfma(i, m)
        if j + D < len(seq2): reads(i + D, seq2[j + D])
        budget = 12
        while fill and budget >= fill[0][1]:
            t, cst = fill.pop(0); A(t); budget -= cst
        if j == 24:
            A.wait_all(vm=True, lg=False)
            A('s_barrier')
            A(f's_cmp_lg_u32 s{s_w}, 0')
            A('s_cbranch_scc1 K1_nosig')
            A(f's_lshl_b32 s{s_t0}, s{s_rt}, 2')
            A('v_mov_b32 v30, 1')
            A('v_mov_b32 v31, 0')
            A('s_mov_b64 exec, 1')
            A.lines.append(f'    buffer_atomic_add v30, v31, s[{sDbg}:{sDbg+3}], s{s_t0} offen sc1')
            A('s_mov_b64 exec, -1')
            A('K1_nosig:')
        if not fill and not z1done:
            z1_store(A, PK, s_f[2]); z1done = True
    assert z1done
    A(f's_lshl_b32 s{s_t0}, s{s_rt}, 2')
    A('v_mov_b32 v31, 0')
    A(f's_mov_b32 s{s_t2}, 0')
    A('K1_poll:')
    A.lines.append(f'    buffer_load_dword v30, v31, s[{sDbg}:{sDbg+3}], s{s_t0} offen sc1')
    A.wait_all(vm=True, lg=False)
    A(f'v_readfirstlane_b32 s{s_t1}, v30')
    A(f's_cmp_ge_u32 s{s_t1}, 16')
    A('s_cbranch_scc1 K1_polled')
    A('s_sleep 2')
    A(f's_add_u32 s{s_t2}, s{s_t2}, 1')
    A(f's_cmp_lt_u32 s{s_t2}, 0x40000')
    A('s_cbranch_scc1 K1_poll')
    A('K1_polled:')
    ST = TMP
    A(f's_lshl_b32 s{s_t0}, s{s_tb}, 13')
    A(f's_add_u32 s{s_t0}, s{s_t0}, {WS_STATS}')
    A(f's_add_u32 s{s_t1}, s{s_t0}, 4096')
    for c in range(16):
        A(f'buffer_load_dwordx2 v[{ST+2*c}:{ST+2*c+1}], v{vL8}, s[{sWs}:{sWs+3}], s{s_t0 if c < 8 else s_t1} offen offset:{(c % 8) * 512} sc1', 'sl')
    A(f's_cmp_eq_u32 s{s_cls}, 1')
    A('s_cbranch_scc1 K1_tailB')
    A(f's_cmp_eq_u32 s{s_cls}, 2')
    A('s_cbranch_scc1 K1_tailC')
    A(f'v_mov_b32 v62, {f32(QSCALE)}')
    A(f'v_mov_b32 v63, {f32(QSCALE)}')
    A(f's_mul_i32 s{s_t0}, s{s_tb}, {160*256}')
    A(f's_lshl_b32 s{s_t1}, s{s_f[3]}, 11')
    A(f's_add_u32 s{s_t0}, s{s_t0}, s{s_t1}')
    for b in range(2):
        acc = ACC[3 + b]
        for i in range(0, 16, 2): A(f'v_pk_mul_f32 v[{acc+i}:{acc+i+1}], v[{acc+i}:{acc+i+1}], v[62:63]')
        cvt16(A, acc, PK + 8 * b)
        for i in range(4):
            A.lines.append(f'    buffer_store_dwordx2 v[{PK+8*b+2*i}:{PK+8*b+2*i+1}], v{vL8}, s[{sWs}:{sWs+3}], s{s_t0} offen offset:{b*2048 + i*512}')
    A('s_branch K1_tail_done')
    A('K1_tailC:')
    gelu_pk(A, ACC[3], RING)
    cvt16(A, ACC[3], PK)
    n0 = len(A.vm); z1_store(A, PK, s_f[3]); A.vm = A.vm[:n0]
    A(f's_cmp_lg_u32 s{s_c1}, 0')
    A('s_cbranch_scc1 K1_tail_done')
    gelu_pk(A, ACC[4], RING)
    cvt16(A, ACC[4], PK + 8)
    n0 = len(A.vm); z1_store(A, PK + 8, s_f[4]); A.vm = A.vm[:n0]
    A('s_branch K1_tail_done')
    A('K1_tailB:')
    kacc, vacc = ACC[3], ACC[4]
    cvt16(A, kacc, PK, 6)
    A(f'v_mul_f32 v19, v{kacc}, v{kacc}')
    for r in range(1, 8): A(f'v_fma_f32 v19, v{kacc+r}, v{kacc+r}, v19')
    A(f'v_mul_f32 v20, v{kacc+8}, v{kacc+8}')
    for r in range(9, 12): A(f'v_fma_f32 v20, v{kacc+r}, v{kacc+r}, v20')
    A('s_mov_b32 exec_lo, 0')
    A('v_mov_b32 v20, 0')
    A(f'v_mov_b32 v{PK+4}, 0x3f803f80')
    A(f'v_mov_b32 v{PK+5}, 0x00003f80')
    A('s_mov_b64 exec, -1')
    A('v_add_f32 v19, v19, v20')
    A('v_mov_b32 v20, v19')
    A('v_permlane32_swap_b32 v19, v20')
    A('v_add_f32 v19, v19, v20')
    for sh in (1, 2, 4, 8):
        A(f'v_max_f32_dpp v19, v19, v19 row_shr:{sh} row_mask:0xf bank_mask:0xf bound_ctrl:0')
    A(f'v_max_f32_dpp v19, v19, v19 row_bcast:15 row_mask:0xa bank_mask:0xf')
    A(f's_sub_u32 s{s_t0}, s{s_tb}, 1')
    A(f's_and_b32 s{s_t0}, s{s_t0}, 63')
    A(f's_mul_i32 s{s_t0}, s{s_t0}, {KV_REC}')
    A(f's_add_u32 s{s_t0}, s{s_t0}, {WS_KV}')
    A.lines.append(f'    buffer_store_dwordx4 v[{PK}:{PK+3}], v{vL16}, s[{sWs}:{sWs+3}], s{s_t0} offen')
    A.lines.append(f'    buffer_store_dwordx2 v[{PK+4}:{PK+5}], v{vL8}, s[{sWs}:{sWs+3}], s{s_t0} offen offset:{KV_KB}')
    A(f's_lshl_b32 s{s_t1}, s{s_tb}, 2')
    A(f's_add_u32 s{s_t1}, s{s_t1}, {WS_KMAX}')
    A('v_mov_b32 v21, 0')
    A('s_mov_b32 exec_lo, 0x80000000')
    A('s_mov_b32 exec_hi, 0')
    A.lines.append(f'    buffer_store_dword v19, v21, s[{sWs}:{sWs+3}], s{s_t1} offen')
    A('s_mov_b64 exec, -1')
    cvt16(A, vacc, PK + 8, 6)
    A(f'v_mul_u32_u24 v21, 72, v{vT}')
    A(f'v_lshl_add_u32 v21, v{vHi}, 3, v21')
    A(f'v_add_u32 v21, s{s_xl}, v21')
    for i in range(3):
        A.lines.append(f'    ds_write_b64 v21, v[{PK+8+2*i}:{PK+9+2*i}] offset:{16*i}')
    A(f'v_lshlrev_b32 v22, 2, v{vHi}')
    A(f'v_bfe_u32 v23, v{vLane}, 2, 2')
    A(f'v_add_u32 v22, v22, v23')
    A(f'v_mul_u32_u24 v22, 72, v22')
    A(f'v_bfe_u32 v23, v{vLane}, 4, 1')
    A(f'v_lshl_add_u32 v22, v23, 5, v22')
    A(f'v_and_b32 v23, 3, v{vLane}')
    A(f'v_lshl_add_u32 v22, v23, 3, v22')
    A(f'v_add_u32 v22, s{s_xl}, v22')
    A('s_waitcnt lgkmcnt(0)')
    for i in range(4):
        A.lines.append(f'    ds_read_b64_tr_b16 v[{RING+2*i}:{RING+2*i+1}], v22 offset:{8*72*i}')
    A(f'v_min_u32 v23, 20, v{vT}')
    A(f'v_lshlrev_b32 v23, 4, v23')
    A(f'v_mul_u32_u24 v24, 336, v{vHi}')
    A(f'v_add_u32 v23, v23, v24')
    A(f's_mul_i32 s{s_t0}, s{s_tb}, {KV_REC}')
    A(f's_add_u32 s{s_t0}, s{s_t0}, {WS_KV}')
    A('s_waitcnt lgkmcnt(0)')
    A('s_mov_b32 exec_lo, 0x00100000')
    A('s_mov_b32 exec_hi, 0x00100000')
    for i in range(8): A(f'v_mov_b32 v{RING+i}, 0x3f803f80')
    A('s_mov_b32 exec_lo, 0x001fffff')
    A('s_mov_b32 exec_hi, 0x001fffff')
    A.lines.append(f'    buffer_store_dwordx4 v[{RING}:{RING+3}], v23, s[{sWs}:{sWs+3}], s{s_t0} offen offset:{KV_V0}')
    A.lines.append(f'    buffer_store_dwordx4 v[{RING+4}:{RING+7}], v23, s[{sWs}:{sWs+3}], s{s_t0} offen offset:{KV_V1}')
    A('s_mov_b64 exec, -1')
    A('K1_tail_done:')
    A.wait_all(vm=True, lg=False)
    P = lambda r: f'v[{r}:{r+1}]'
    for st in (16, 8, 4, 2):
        for i in range(0, st, 2): A(f'v_pk_add_f32 {P(ST+i)}, {P(ST+i)}, {P(ST+i+st)}')
    A(f'v_mov_b32 v20, v{ST}')
    A(f'v_mov_b32 v21, v{ST+1}')
    A(f'v_permlane32_swap_b32 v{ST}, v20')
    A(f'v_permlane32_swap_b32 v{ST+1}, v21')
    A(f'v_add_f32 v20, v20, v{ST}')
    A(f'v_add_f32 v21, v21, v{ST+1}')
    A(f'v_mul_f32 v20, {f32(1.0/864)}, v20')
    A(f'v_mul_f32 v21, {f32(1.0/864)}, v21')
    A(f'v_fma_f32 v21, -v20, v20, v21')
    A(f'v_max_f32 v21, 0, v21')
    A(f'v_add_f32 v21, {f32(1e-5)}, v21')
    A(f'v_rsq_f32 v24, v21')
    A(f'v_mul_f32 v26, v20, v24')
    A(f'v_sub_f32 v26, 0, v26')
    A(f'v_mov_b32 v25, v24')
    A(f'v_mov_b32 v27, v26')
    A(f'v_mul_u32_u24 v21, 72, v{vT}')
    A(f'v_lshl_add_u32 v21, v{vHi}, 3, v21')
    A(f'v_add_u32 v21, s{s_xl}, v21')
    A(f'v_lshlrev_b32 v22, 3, v{vHi}')
    A(f'v_bfe_u32 v23, v{vLane}, 2, 2')
    A(f'v_add_u32 v22, v22, v23')
    A(f'v_mul_u32_u24 v22, 72, v22')
    A(f'v_bfe_u32 v23, v{vLane}, 4, 1')
    A(f'v_lshl_add_u32 v22, v23, 5, v22')
    A(f'v_and_b32 v23, 3, v{vLane}')
    A(f'v_lshl_add_u32 v22, v23, 3, v22')
    A(f'v_add_u32 v22, s{s_xl}, v22')
    def z2_out(acc, sfi, pk, ldsoff, rd):
        for i in range(0, 16, 2): A(f'v_pk_fma_f32 {P(acc+i)}, {P(acc+i)}, v[24:25], v[26:27]')
        cvt16(A, acc, pk)
        for i in range(4): A(f'ds_write_b64 v21, v[{pk+2*i}:{pk+2*i+1}] offset:{ldsoff + 16*i}')
        A('s_waitcnt lgkmcnt(0)')
        for i, ro in enumerate((0, 4, 16, 20)):
            A(f'ds_read_b64_tr_b16 v[{rd+2*i}:{rd+2*i+1}], v22 offset:{ldsoff + 72*ro}')
        A(f's_lshl_b32 s{s_t0}, s{sfi}, 17')
        A(f's_lshl_b32 s{s_t1}, s{s_tb}, 11')
        A(f's_add_u32 s{s_t0}, s{s_t0}, s{s_t1}')
        A(f's_add_u32 s{s_t0}, s{s_t0}, {WS_Z2F}')
        A('s_waitcnt lgkmcnt(0)')
        A(f'buffer_store_dwordx4 v[{rd}:{rd+3}], v{vL16}, s[{sWs}:{sWs+3}], s{s_t0} offen')
        A(f'buffer_store_dwordx4 v[{rd+4}:{rd+7}], v{vL16}, s[{sWs}:{sWs+3}], s{s_t0} offen offset:1024')
    z2_out(ACC[0], s_f[0], PK, 0, RING)
    A(f's_cmp_eq_u32 s{s_cls}, 2')
    A('s_cbranch_scc1 K1_b1_z1')
    z2_out(ACC[1], s_f[1], PK + 8, 16384, RING + 8)
    A('s_branch K1_end')
    A('K1_b1_z1:')
    cvt16(A, ACC[1], PK + 8)
    z1_store(A, PK + 8, s_f[1])
    A('K1_end:')
    A('s_endpgm')
    rep = []
    lines = fix_hazards(A.lines, rep)
    return lines, kernel_desc(NAME, 360, 200), f'; @launch kernel={NAME} grid=(256,1,1) block=(256,1,1) lds={LDS}', rep

if __name__ == '__main__':
    l, d, la, rep = gen()
    print(len(l));
    for r in rep: print(r)
```

```python
from asmlib import *
from common import *

NAME = 'k2_attn_kernel'
LDS = 122880
sWsp, sWs, sKV, sBsp = 24, 28, 32, 36
s_w, s_tb, s_hA, s_tb64, s_fb, s_gok = 3, 4, 5, 6, 7, 40
s_t0, s_t1, s_t2 = 41, 42, 43
s_mWc, s_mWo, s_mKc, s_mKo, s_ko, s_kvo, s_zo, s_cnt, s_km = 44, 45, 46, 47, 48, 49, 50, 51, 52
s_ab = 53
s_zlim, s_big = 54, 55
vLane, vHi, vT, vL16, vL8 = 1, 2, 3, 4, 5
vKA, vKB, vVr = 6, 7, 8
vWr = [9, 10, 11, 12]
vWg = [13, 14]; vKVg = 15
T0 = 16
SA, SB = 24, 40
PA, PB = 56, 64
OA, OB = 72, 88
GA = [104, 120]
QA1, QB1, QA2, QB2 = 136, 140, 144, 146
KA = [148, 156]; KB = [152, 160]
VV = [164, 172]
WF = [180, 196]
Z1 = 212
vGa, vGy, vBy = 228, 229, 231
NV = 236
BUF = 28672

def mf(d, a, b, c):  return f'v_mfma_f32_32x32x16_bf16 v[{d}:{d+15}], {a}, {b}, {c}'
def R4(r): return f'v[{r}:{r+3}]'
def R2(r): return f'v[{r}:{r+1}]'
def R16(r): return f'v[{r}:{r+15}]'

def split_m(A, m, q2):
    a, b, c = T0 + 4, T0 + 5, T0 + 6
    A(f'v_sub_f32 v{a}, 0, v{m}')
    A(f'v_and_b32 v{b}, 0xffff0000, v{a}')
    A(f'v_sub_f32 v{a}, v{a}, v{b}')
    A(f'v_and_b32 v{c}, 0xffff0000, v{a}')
    A(f'v_sub_f32 v{a}, v{a}, v{c}')
    A(f'v_lshrrev_b32 v{b}, 16, v{b}')
    A('s_mov_b32 exec_lo, 0')
    A(f'v_or_b32 v{q2}, v{b}, v{c}')
    A(f'v_lshrrev_b32 v{q2+1}, 16, v{a}')
    A('s_mov_b64 exec, -1')

def body_iter(A, n, tail=False):
    p = n % 2; q = n % 4; j = n // 4
    nx = 1 - p
    z0 = (2 * (n - 1)) % 16
    Z = lambda e: f'a[{4*e}:{4*e+3}]'
    off = j * BUF
    kvo = off + 16384 + q * KV_REC
    wo = off + (q // 2) * 8192
    mem = [[] for _ in range(12)]
    if not tail:
        pre = []
        if q == 0:
            pre = ['s_waitcnt vmcnt(15)', 's_barrier']
        mem[0] = pre + [f'ds_read_b128 {R4(KA[nx])}, v{vKA} offset:{kvo + KV_KA}']
        mem[1] = [f'ds_read_b64 {R2(KB[nx])}, v{vKB} offset:{kvo + KV_KB}']
        mem[2] = [f'ds_read_b128 {R4(VV[nx])}, v{vVr} offset:{kvo + KV_V0}']
        mem[3] = [f'ds_read_b128 {R4(VV[nx]+4)}, v{vVr} offset:{kvo + KV_V1}']
        for k in range(4):
            ks, tbk = k // 2, k % 2
            mem[4 + k] = [f'ds_read_b128 {R4(WF[nx] + 4*k)}, v{vWr[2*(q % 2) + ks]} offset:{wo + tbk*4096}']
        zoff = (n % 2) * 2048
        mem[8] = [f'buffer_load_dwordx4 {Z(z0)}, v{vL16}, s[{sWs}:{sWs+3}], s{s_zo} offen offset:{zoff}']
        mem[10] = ['s_waitcnt lgkmcnt(0)', f'buffer_load_dwordx4 {Z(z0+1)}, v{vL16}, s[{sWs}:{sWs+3}], s{s_zo} offen offset:{zoff+1024}']
        mW, mK, dof = (s_mWo, s_mKo, BUF) if j == 0 else (s_mWc, s_mKc, 0)
        def wdma(sig, eta):
            return [f's_add_u32 m0, s{mW}, {dof + sig*8192 + eta*1024 - sig*128}',
                    f'buffer_load_dwordx4 v{vWg[eta]}, s[{sWsp}:{sWsp+3}], s{s_ko} offen offset:{sig*128} lds']
        def kdma(k):
            return [f'buffer_load_dwordx4 v{vKVg}, s[{sKV}:{sKV+3}], s{s_kvo} offen offset:{k*1024} lds']
        if q == 0: mem[9] = wdma(0, 0); mem[11] = wdma(0, 1)
        if q == 1: mem[9] = wdma(1, 0); mem[11] = wdma(1, 1)
        if q == 2:
            mem[9] = [f's_add_u32 m0, s{mK}, {dof}'] + kdma(0); mem[11] = [f's_add_u32 s{s_ko}, s{s_ko}, 256'] + kdma(1)
        if q == 3:
            mem[9] = kdma(2); mem[11] = [f's_add_u32 s{s_kvo}, s{s_kvo}, {4*KV_REC}']
        if n % 2 == 1: mem[11] = mem[11] + [f's_add_u32 s{s_zo}, s{s_zo}, 4096']
        if q == 3:
            mem[1] = [f's_cmp_ge_u32 s{s_ko}, 4096'] + mem[1]
            mem[2] = [f's_cselect_b32 s{s_ko}, s{s_big}, s{s_ko}'] + mem[2]
        if n % 2 == 0:
            mem[3] = [f's_cmp_ge_u32 s{s_zo}, s{s_zlim}'] + mem[3]
            mem[4] = [f's_cselect_b32 s{s_zo}, s{s_big}, s{s_zo}'] + mem[4]
        for k in (9, 11):
            if mem[k] and mem[k][0].startswith('s_add_u32 m0'):
                if k == 9: mem[8] = [mem[k][0]] + mem[8]; mem[k] = mem[k][1:]
                else: mem[10] = mem[10] + [mem[k][0]]; mem[k] = mem[k][1:]
    def phase(base, Sx, Px, Ox, Q1, Q2, Sy, Py, ks, do_exp=True):
        e = lambda i: f'v_exp_f32 v{Sy+i}, v{Sy+i}'
        cx = lambda k: f'v_cvt_pk_bf16_f32 v{Px+k}, v{Sx+2*k}, v{Sx+2*k+1}'
        cy = lambda k: f'v_cvt_pk_bf16_f32 v{Py+k}, v{Sy+2*k}, v{Sy+2*k+1}'
        M = [mf(Ox, R4(VV[p]), R4(Px), R16(Ox)),
             mf(GA[0], Z(z0 + ks), R4(WF[p] + 8*ks), R16(GA[0])),
             mf(Sx, R4(KA[p]), R4(Q1), '0'),
             f'v_mfma_f32_32x32x8_bf16 {R16(Sx)}, {R2(KB[p])}, {R2(Q2)}, {R16(Sx)}',
             mf(GA[1], Z(z0 + ks), R4(WF[p] + 8*ks + 4), R16(GA[1])),
             mf(Ox, R4(VV[p] + 4), R4(Px + 4), R16(Ox))]
        V = [[e(0), e(1), cx(6), cx(7)], [e(2), e(3), e(4), cy(0)], [e(5), e(6), e(7), cy(1)],
             [e(8), e(9), cy(2), cy(3)], [e(10), e(11), e(12), cy(4)], [e(13), e(14), e(15), cy(5)]]
        if not do_exp: V = [[cx(6), cx(7)], [], [], [], [], []]
        for k in range(6):
            if not (tail and k in (2, 3)): A(M[k])
            for t in mem[base + k]: A(t)
            for t in V[k]: A(t)
    phase(0, SA, PA, OA, QA1, QA2, SB, PB, 0)
    phase(6, SB, PB, OB, QB1, QB2, SA, PA, 1, do_exp=not tail)

def gen():
    A = Asm()
    A(kernel_header(NAME))
    A('s_cmp_ge_u32 s2, 256')
    A('s_cbranch_scc1 K2_end')
    A('s_load_dwordx4 s[8:11], s[0:1], 56')
    A('s_load_dwordx2 s[12:13], s[0:1], 104')
    A(f'v_and_b32 v{vLane}, 63, v0')
    A(f'v_lshrrev_b32 v{T0}, 6, v0')
    A(f'v_lshrrev_b32 v{vHi}, 5, v{vLane}')
    A(f'v_readfirstlane_b32 s{s_w}, v{T0}')
    A(f'v_and_b32 v{vT}, 31, v{vLane}')
    A(f'v_lshlrev_b32 v{vL16}, 4, v{vLane}')
    A(f'v_lshlrev_b32 v{vL8}, 3, v{vLane}')
    A(f's_lshr_b32 s{s_tb}, s2, 2')
    A(f's_and_b32 s{s_hA}, s2, 3')
    A(f's_lshl_b32 s{s_hA}, s{s_hA}, 3')
    A(f's_lshl_b32 s{s_t0}, s{s_w}, 1')
    A(f's_add_u32 s{s_hA}, s{s_hA}, s{s_t0}')
    A(f's_lshr_b32 s{s_t0}, s2, 3')
    A(f's_mul_i32 s{s_t1}, s{s_t0}, 37')
    A(f's_lshr_b32 s{s_t1}, s{s_t1}, 8')
    A(f's_mul_i32 s{s_t2}, s{s_t1}, 7')
    A(f's_sub_u32 s{s_t2}, s{s_t0}, s{s_t2}')
    A(f's_and_b32 s{s_t1}, s{s_t1}, 3')
    A(f's_and_b32 s{s_tb64}, s2, 7')
    A(f's_lshl_b32 s{s_tb64}, s{s_tb64}, 2')
    A(f's_add_u32 s{s_tb64}, s{s_tb64}, s{s_t1}')
    A(f's_lshl_b32 s{s_fb}, s{s_t2}, 2')
    A(f's_add_u32 s{s_fb}, s{s_fb}, s{s_w}')
    A(f's_cmp_lt_u32 s{s_t0}, 28')
    A(f's_cselect_b32 s{s_gok}, 1, 0')
    A(f's_cmp_lt_u32 s{s_fb}, 27')
    A(f's_cselect_b32 s{s_gok}, s{s_gok}, 0')
    A(f's_lshl_b32 s{s_t0}, s{s_tb64}, 6')
    A(f's_lshl_b32 s{s_t1}, s{s_w}, 4')
    A(f's_add_u32 s{s_t0}, s{s_t0}, s{s_t1}')
    A(f'v_lshrrev_b32 v{T0}, 3, v{vLane}')
    A(f'v_add_u32 v{T0}, s{s_t0}, v{T0}')
    A(f'v_lshlrev_b32 v{T0}, 12, v{T0}')
    A(f'v_and_b32 v{T0+1}, 7, v{vLane}')
    A(f'v_lshrrev_b32 v{T0+2}, 4, v{vLane}')
    A(f'v_xor_b32 v{T0+1}, v{T0+1}, v{T0+2}')
    A(f'v_lshlrev_b32 v{T0+1}, 4, v{T0+1}')
    A(f'v_add_u32 v{vWg[0]}, v{T0}, v{T0+1}')
    A(f'v_xor_b32 v{T0+1}, 64, v{T0+1}')
    A(f'v_add_u32 v{vWg[1]}, v{T0}, v{T0+1}')
    A(f'v_add_u32 v{vWg[1]}, 32768, v{vWg[1]}')
    A(f's_mul_i32 s{s_t0}, s{s_w}, {KV_REC}')
    A(f'v_add_u32 v{vKVg}, s{s_t0}, v{vL16}')
    A(f's_add_u32 s{s_mKc}, s{s_t0}, 16384')
    A(f's_add_u32 s{s_mKo}, s{s_mKc}, 65536')
    A(f's_lshl_b32 s{s_mWc}, s{s_w}, 11')
    A(f's_add_u32 s{s_mWo}, s{s_mWc}, 65536')
    A(f's_lshl_b32 s{s_zo}, s{s_fb}, 17')
    A(f's_add_u32 s{s_zo}, s{s_zo}, {WS_Z2F}')
    A(f's_add_u32 s{s_zlim}, s{s_zo}, 131072')
    A(f's_mov_b32 s{s_big}, 0x40000000')
    A(f'v_mov_b32 v{QA2}, 0'); A(f'v_mov_b32 v{QA2+1}, 0'); A(f'v_mov_b32 v{QB2}, 0'); A(f'v_mov_b32 v{QB2+1}, 0')
    A(f'v_lshlrev_b32 v{T0+3}, 2, v{vLane}')
    A('s_waitcnt lgkmcnt(0)')
    srd(A, sWsp, 8, 9, 2048*4096)
    srd(A, sWs, 12, 13, WS_SIZE)
    A(f's_add_u32 s{sKV}, s12, {WS_KV}')
    A(f's_addc_u32 s{sKV+1}, s13, 0')
    A(f's_mov_b32 s{sKV+2}, {64*KV_REC}')
    A(f's_mov_b32 s{sKV+3}, 0x00020000')
    srd(A, sBsp, 10, 11, 4096)
    A(f's_mul_i32 s{s_t0}, s{s_tb}, 40960')
    A(f's_mul_i32 s{s_t1}, s{s_hA}, 1280')
    A(f's_add_u32 s{s_t0}, s{s_t0}, s{s_t1}')
    W = f's[{sWs}:{sWs+3}]'
    A(f's_mov_b32 s{s_t1}, {WS_KMAX}')
    A(f'buffer_load_dword v{T0}, v{T0+3}, {W}, s{s_t1} offen', 'q')
    A(f'buffer_load_dwordx2 {R2(QA1)}, v{vL8}, {W}, s{s_t0} offen', 'q')
    A(f'buffer_load_dwordx2 {R2(QA1+2)}, v{vL8}, {W}, s{s_t0} offen offset:512', 'q')
    A(f'buffer_load_dwordx2 {R2(QB1)}, v{vL8}, {W}, s{s_t0} offen offset:1280', 'q')
    A(f'buffer_load_dwordx2 {R2(QB1+2)}, v{vL8}, {W}, s{s_t0} offen offset:1792', 'q')
    A('s_mov_b32 exec_hi, 0')
    A(f'buffer_load_dwordx2 {R2(QA2)}, v{vL8}, {W}, s{s_t0} offen offset:1024', 'q')
    A(f'buffer_load_dwordx2 {R2(QB2)}, v{vL8}, {W}, s{s_t0} offen offset:2304', 'q')
    A('s_mov_b64 exec, -1')
    A(f's_mov_b32 s{s_t1}, {63*KV_REC}')
    A(f'buffer_load_dwordx4 {R4(KA[0])}, v{vL16}, s[{sKV}:{sKV+3}], s{s_t1} offen', 'q')
    A(f'buffer_load_dwordx2 {R2(KB[0])}, v{vL8}, s[{sKV}:{sKV+3}], s{s_t1} offen offset:{KV_KB}', 'q')
    A(f's_mov_b32 s{s_ko}, 0')
    A(f's_mov_b32 s{s_kvo}, 0')
    def fill(s):
        mW, mK, dof = ((s_mWc, s_mKc, 0), (s_mWc, s_mKc, BUF), (s_mWo, s_mKo, 0))[s]
        A(f's_add_u32 m0, s{mK}, {dof}')
        for k in range(3): A(f'buffer_load_dwordx4 v{vKVg}, s[{sKV}:{sKV+3}], s{s_kvo} offen offset:{k*1024} lds')
        for sig in range(2):
            for eta in range(2):
                A(f's_add_u32 m0, s{mW}, {dof + sig*8192 + eta*1024 - sig*128}')
                A(f'buffer_load_dwordx4 v{vWg[eta]}, s[{sWsp}:{sWsp+3}], s{s_ko} offen offset:{sig*128} lds')
        A(f's_add_u32 s{s_ko}, s{s_ko}, 256')
        A(f's_add_u32 s{s_kvo}, s{s_kvo}, {4*KV_REC}')
    def zl(e):
        A(f'buffer_load_dwordx4 a[{4*e}:{4*e+3}], v{vL16}, {W}, s{s_zo} offen offset:{(e % 4)*1024}')
        if e % 4 == 3: A(f's_add_u32 s{s_zo}, s{s_zo}, 4096')
    fill(0)
    for e in range(6): zl(e)
    fill(1)
    for e in range(6, 14): zl(e)
    A(f's_add_u32 s{s_zo}, s{s_zo}, 2048')
    fill(2)
    A(f's_mul_i32 s{s_t0}, s{s_tb64}, {2*54*1024}')
    A(f's_lshl_b32 s{s_t1}, s{s_fb}, 11')
    A(f's_add_u32 s{s_t0}, s{s_t0}, s{s_t1}')
    A(f's_add_u32 s{s_t0}, s{s_t0}, {WS_Z1F}')
    A(f's_add_u32 s{s_t1}, s{s_t0}, {54*1024}')
    A(f'buffer_load_dwordx4 {R4(Z1)}, v{vL16}, {W}, s{s_t0} offen')
    A(f'buffer_load_dwordx4 {R4(Z1+4)}, v{vL16}, {W}, s{s_t0} offen offset:1024')
    A(f'buffer_load_dwordx4 {R4(Z1+8)}, v{vL16}, {W}, s{s_t1} offen')
    A(f'buffer_load_dwordx4 {R4(Z1+12)}, v{vL16}, {W}, s{s_t1} offen offset:1024')
    A(f'v_lshlrev_b32 v{T0+1}, 2, v{vT}')
    A(f'v_lshlrev_b32 v{T0+2}, 1, v{vT}')
    A(f's_lshl_b32 s{s_t0}, s{s_tb}, 7')
    A(f's_add_u32 s{s_t0}, s{s_t0}, {WS_GATE}')
    A(f'buffer_load_dword v{vGa}, v{T0+1}, {W}, s{s_t0} offen')
    A(f's_lshl_b32 s{s_t0}, s{s_tb64}, 8')
    A(f's_add_u32 s{s_t0}, s{s_t0}, {WS_GATE}')
    A(f'buffer_load_dword v{vGy}, v{T0+1}, {W}, s{s_t0} offen')
    A(f'buffer_load_dword v{vGy+1}, v{T0+1}, {W}, s{s_t0} offen offset:128')
    A(f's_lshl_b32 s{s_t0}, s{s_tb64}, 7')
    A(f'buffer_load_ushort v{vBy}, v{T0+2}, s[{sBsp}:{sBsp+3}], s{s_t0} offen')
    A(f'buffer_load_ushort v{vBy+1}, v{T0+2}, s[{sBsp}:{sBsp+3}], s{s_t0} offen offset:64')
    A(f'v_mov_b32 v{vKA}, v{vL16}')
    A(f'v_mov_b32 v{vKB}, v{vL8}')
    A(f'v_min_u32 v{vVr}, 20, v{vT}')
    A(f'v_lshlrev_b32 v{vVr}, 4, v{vVr}')
    A(f'v_mul_u32_u24 v{T0+1}, 336, v{vHi}')
    A(f'v_add_u32 v{vVr}, v{vVr}, v{T0+1}')
    A(f'v_lshrrev_b32 v{T0+1}, 1, v{vT}')
    A(f'v_and_b32 v{T0+1}, 7, v{T0+1}')
    A(f'v_lshlrev_b32 v{T0+2}, 7, v{vT}')
    for ks in range(4):
        A(f'v_add_u32 v{T0+3}, {2*ks}, v{vHi}')
        A(f'v_xor_b32 v{T0+3}, v{T0+3}, v{T0+1}')
        A(f'v_lshl_add_u32 v{vWr[ks]}, v{T0+3}, 4, v{T0+2}')
    for r in list(range(SA, GA[1] + 16)) + list(range(VV[0], VV[0] + 8)) + list(range(WF[0], WF[0] + 16)):
        A(f'v_mov_b32 v{r}, 0')
    for r in range(56, 64): A(f'v_accvgpr_write_b32 a{r}, 0')
    A.wait_vm('q')
    for sh in (1, 2, 4, 8):
        A(f'v_max_f32_dpp v{T0}, v{T0}, v{T0} row_shr:{sh} row_mask:0xf bank_mask:0xf bound_ctrl:0')
    A(f'v_max_f32_dpp v{T0}, v{T0}, v{T0} row_bcast:15 row_mask:0xa bank_mask:0xf')
    A(f'v_max_f32_dpp v{T0}, v{T0}, v{T0} row_bcast:31 row_mask:0xc bank_mask:0xf')
    A(f'v_readlane_b32 s{s_km}, v{T0}, 63')
    for (q1, q2, t) in ((QA1, QA2, T0 + 1), (QB1, QB2, T0 + 2)):
        A(f'v_mov_b32 v{t}, 0')
        for r in [q1, q1+1, q1+2, q1+3, q2, q2+1]:
            A(f'v_dot2_f32_bf16 v{t}, v{r}, v{r}, v{t}')
    A('s_nop 2')
    for (q2, t) in ((QA2, T0 + 1), (QB2, T0 + 2)):
        A(f'v_mov_b32 v{T0+3}, v{t}')
        A(f'v_permlane32_swap_b32 v{t}, v{T0+3}')
        A(f'v_add_f32 v{t}, v{t}, v{T0+3}')
        A(f'v_mul_f32 v{t}, s{s_km}, v{t}')
        A(f'v_sqrt_f32 v{t}, v{t}')
        A(f'v_mul_f32 v{t}, {f32(1.01)}, v{t}')
        split_m(A, t, q2)
    A(f's_mov_b32 s{s_cnt}, 8')
    pro = A.lines
    B = Asm()
    B('.p2align 6')
    B('K2_loop:')
    for n in range(8): body_iter(B, n)
    for r in [vKA, vKB, vVr] + vWr: B(f'v_xor_b32 v{r}, 0x10000, v{r}')
    for s in (s_mWc, s_mWo, s_mKc, s_mKo): B(f's_xor_b32 s{s}, s{s}, 0x10000')
    B(f's_sub_u32 s{s_cnt}, s{s_cnt}, 1')
    B(f's_cmp_lg_u32 s{s_cnt}, 0')
    B('s_cbranch_scc1 K2_loop')
    loop = B.lines
    rep = []
    chk = fix_hazards(loop + loop, rep)
    assert not rep, rep
    E = Asm()
    E('s_waitcnt vmcnt(15)')
    body_iter(E, 0, tail=True)
    E('K2_check:')
    E(f'v_min_f32 v{T0}, v{OA+12}, v{OB+12}')
    E(f'v_mov_b32 v{T0+1}, {f32(2.0**-90)}')
    E(f'v_cmp_nge_f32 vcc, v{T0}, v{T0+1}')
    E(f'v_cmp_u_f32 s[{s_t0+1}:{s_t0+2}], v{OA+12}, v{OB+12}')
    E(f's_or_b64 vcc, vcc, s[{s_t0+1}:{s_t0+2}]')
    E('s_cbranch_vccnz K2_fallback')
    E('K2_epi:')
    E(f'v_rcp_f32 v{T0}, v{OA+12}')
    E(f'v_rcp_f32 v{T0+2}, v{OB+12}')
    E(f'v_mul_f32 v{T0}, v{T0}, v{vGa}')
    E(f'v_mul_f32 v{T0+2}, v{T0+2}, v{vGa}')
    E(f'v_mov_b32 v{T0+1}, v{T0}')
    E(f'v_mov_b32 v{T0+3}, v{T0+2}')
    for (o, t) in ((OA, T0), (OB, T0 + 2)):
        for i in range(0, 12, 2): E(f'v_pk_mul_f32 {R2(o+i)}, {R2(o+i)}, {R2(t)}')
    for k in range(4): E(f'v_cvt_pk_bf16_f32 v{PA+k}, v{OA+2*k}, v{OA+2*k+1}')
    for k in range(4): E(f'v_cvt_pk_bf16_f32 v{PA+4+k}, v{OB+2*k}, v{OB+2*k+1}')
    for k in range(2): E(f'v_cvt_pk_bf16_f32 v{PB+k}, v{OA+8+2*k}, v{OA+9+2*k}')
    for k in range(2): E(f'v_cvt_pk_bf16_f32 v{PB+2+k}, v{OB+8+2*k}, v{OB+9+2*k}')
    E(f's_mul_i32 s{s_ab}, s{s_tb}, {188*512}')
    E(f's_add_u32 s{s_ab}, s{s_ab}, {WS_AF}')
    E(f's_lshl_b32 s{s_t0}, s{s_hA}, 10')
    E(f's_add_u32 s{s_t0}, s{s_t0}, s{s_ab}')
    E(f'buffer_store_dwordx4 {R4(PA)}, v{vL16}, {W}, s{s_t0} offen')
    E(f'buffer_store_dwordx4 {R4(PA+4)}, v{vL16}, {W}, s{s_t0} offen offset:1024')
    E(f's_lshl_b32 s{s_t0}, s{s_hA}, 8')
    E(f's_add_u32 s{s_t0}, s{s_t0}, s{s_ab}')
    E(f's_add_u32 s{s_t0}, s{s_t0}, {64*512}')
    E('s_mov_b32 exec_hi, 0')
    E(f'buffer_store_dwordx4 {R4(PB)}, v{vL16}, {W}, s{s_t0} offen')
    E('s_mov_b64 exec, -1')
    E(f's_cmp_eq_u32 s{s_gok}, 0')
    E('s_cbranch_scc1 K2_end')
    E(f's_mul_i32 s{s_t0}, s{s_tb64}, {2*188*512}')
    E(f's_lshl_b32 s{s_t1}, s{s_fb}, 11')
    E(f's_add_u32 s{s_t0}, s{s_t0}, s{s_t1}')
    E(f's_add_u32 s{s_t0}, s{s_t0}, {WS_AF + 80*512}')
    E(f's_add_u32 s{s_t1}, s{s_t0}, {188*512}')
    for tbk in range(2):
        c, d = T0, T0 + 2
        E(f'v_sub_f32 v{c}, 1.0, v{vGy+tbk}')
        E(f'v_lshlrev_b32 v{d}, 16, v{vBy+tbk}')
        E(f'v_mul_f32 v{d}, v{d}, v{c}')
        E(f'v_mov_b32 v{c+1}, v{c}')
        E(f'v_mov_b32 v{d+1}, v{d}')
        g = GA[tbk]; z = Z1 + 8 * tbk; u = SA
        for i in range(0, 16, 2): E(f'v_pk_fma_f32 {R2(g+i)}, {R2(g+i)}, {R2(c)}, {R2(d)}')
        for k in range(8):
            E(f'v_lshlrev_b32 v{u+2*k}, 16, v{z+k}')
            E(f'v_and_b32 v{u+2*k+1}, 0xffff0000, v{z+k}')
        for i in range(0, 16, 2): E(f'v_pk_mul_f32 {R2(g+i)}, {R2(g+i)}, {R2(u+i)}')
        o = SB + 8 * tbk
        for k in range(8): E(f'v_cvt_pk_bf16_f32 v{o+k}, v{g+2*k}, v{g+2*k+1}')
        so = (s_t0, s_t1)[tbk]
        E(f'buffer_store_dwordx4 {R4(o)}, v{vL16}, {W}, s{so} offen')
        E(f'buffer_store_dwordx4 {R4(o+4)}, v{vL16}, {W}, s{so} offen offset:1024')
    E('K2_end:')
    E('s_endpgm')
    E('K2_fallback:')
    E('s_waitcnt vmcnt(0)')
    KVS = f's[{sKV}:{sKV+3}]'
    E('s_mov_b32 exec_lo, 0')
    for r in (QA2, QA2+1, QB2, QB2+1): E(f'v_mov_b32 v{r}, 0')
    E('s_mov_b64 exec, -1')
    mA, mB = T0 + 1, T0 + 2
    E(f'v_mov_b32 v{mA}, 0xff800000')
    E(f'v_mov_b32 v{mB}, 0xff800000')
    E(f's_mov_b32 s{s_t0}, 0')
    E('K2_fb1:')
    E(f'buffer_load_dwordx4 {R4(KA[0])}, v{vL16}, {KVS}, s{s_t0} offen')
    E(f'buffer_load_dwordx2 {R2(KB[0])}, v{vL8}, {KVS}, s{s_t0} offen offset:{KV_KB}')
    E('s_waitcnt vmcnt(0)')
    for (S, q1, q2) in ((SA, QA1, QA2), (SB, QB1, QB2)):
        E(mf(S, R4(KA[0]), R4(q1), '0'))
        E(f'v_mfma_f32_32x32x8_bf16 {R16(S)}, {R2(KB[0])}, {R2(q2)}, {R16(S)}')
    for (S, m) in ((SA, mA), (SB, mB)):
        for i in range(0, 16, 2): E(f'v_max3_f32 v{m}, v{S+i}, v{S+i+1}, v{m}')
    E(f's_add_u32 s{s_t0}, s{s_t0}, {KV_REC}')
    E(f's_cmp_lt_u32 s{s_t0}, {64*KV_REC}')
    E('s_cbranch_scc1 K2_fb1')
    for (m, q2) in ((mA, QA2), (mB, QB2)):
        E(f'v_mov_b32 v{T0+3}, v{m}')
        E(f'v_permlane32_swap_b32 v{m}, v{T0+3}')
        E(f'v_max_f32 v{m}, v{m}, v{T0+3}')
        split_m(E, m, q2)
    for r in range(OA, OB + 16): E(f'v_mov_b32 v{r}, 0')
    E(f'v_and_b32 v{vVr}, 0xffff, v{vVr}')
    E(f's_mov_b32 s{s_t0}, {63*KV_REC}')
    E(f's_mov_b32 s{s_t1}, 0')
    E('K2_fb2:')
    E(f'buffer_load_dwordx4 {R4(KA[0])}, v{vL16}, {KVS}, s{s_t0} offen')
    E(f'buffer_load_dwordx2 {R2(KB[0])}, v{vL8}, {KVS}, s{s_t0} offen offset:{KV_KB}')
    E(f'buffer_load_dwordx4 {R4(VV[0])}, v{vVr}, {KVS}, s{s_t1} offen offset:{KV_V0}')
    E(f'buffer_load_dwordx4 {R4(VV[0]+4)}, v{vVr}, {KVS}, s{s_t1} offen offset:{KV_V1}')
    E('s_waitcnt vmcnt(0)')
    for (S, q1, q2) in ((SA, QA1, QA2), (SB, QB1, QB2)):
        E(mf(S, R4(KA[0]), R4(q1), '0'))
        E(f'v_mfma_f32_32x32x8_bf16 {R16(S)}, {R2(KB[0])}, {R2(q2)}, {R16(S)}')
    for (S, P_, O) in ((SA, PA, OA), (SB, PB, OB)):
        for i in range(16): E(f'v_exp_f32 v{S+i}, v{S+i}')
        for k in range(8): E(f'v_cvt_pk_bf16_f32 v{P_+k}, v{S+2*k}, v{S+2*k+1}')
        E(mf(O, R4(VV[0]), R4(P_), R16(O)))
        E(mf(O, R4(VV[0]+4), R4(P_+4), R16(O)))
    E(f's_mov_b32 s{s_t0}, s{s_t1}')
    E(f's_add_u32 s{s_t1}, s{s_t1}, {KV_REC}')
    E(f's_cmp_lt_u32 s{s_t1}, {64*KV_REC}')
    E('s_cbranch_scc1 K2_fb2')
    E('s_nop 15')
    E('s_branch K2_epi')
    rep = []
    lines = fix_hazards(pro + loop + E.lines, rep)
    return lines, kernel_desc(NAME, NV + 64, NV), f'; @launch kernel={NAME} grid=(256,1,1) block=(256,1,1) lds={LDS}', rep

if __name__ == '__main__':
    l, d, la, rep = gen()
    print(len(l))
    for r in rep: print(r)
```

```python
from asmlib import *
from common import *

NAME = 'k3_out_kernel'
LDS = 163840
sWo, sWout, sWs, sOut = 24, 28, 32, 36
s_w, s_tb64, s_nt, s_t0, s_t1, s_t2, s_ao, s_wo, s_ml, s_nb = 3, 4, 5, 40, 41, 42, 43, 44, 45, 46
vLane = 1
vRho = [2, 3, 4, 5, 6]; vCol = [7, 8, 9, 10, 11]
vM = [12, 13, 14, 15, 16]; vL = [17, 18, 19, 20, 21]; vY = [22, 23, 24, 25, 26]
vAct = 27; vTr = [28, 29, 30]
T0 = 32
ACC = 40
RING = 60; NR = 7; D = 6
PK = 88
NV = 100
SLOT = 20480

def gen():
    A = Asm()
    A(kernel_header(NAME))
    A('s_cmp_ge_u32 s2, 256')
    A('s_cbranch_scc1 K3_end')
    A('s_load_dwordx2 s[8:9], s[0:1], 32')
    A('s_load_dwordx2 s[10:11], s[0:1], 72')
    A('s_load_dwordx2 s[12:13], s[0:1], 88')
    A('s_load_dwordx2 s[14:15], s[0:1], 104')
    A(f'v_and_b32 v{vLane}, 63, v0')
    A(f'v_lshrrev_b32 v{T0}, 6, v0')
    A(f's_and_b32 s{s_t0}, s2, 7')
    A(f'v_readfirstlane_b32 s{s_w}, v{T0}')
    A(f's_lshr_b32 s{s_t1}, s2, 3')
    A(f's_lshr_b32 s{s_tb64}, s{s_t0}, 1')
    A(f's_lshl_b32 s{s_tb64}, s{s_tb64}, 3')
    A(f's_and_b32 s{s_t2}, s{s_t1}, 7')
    A(f's_add_u32 s{s_tb64}, s{s_tb64}, s{s_t2}')
    A(f's_and_b32 s{s_nt}, s{s_t0}, 1')
    A(f's_lshl_b32 s{s_nt}, s{s_nt}, 2')
    A(f's_lshr_b32 s{s_t2}, s{s_t1}, 3')
    A(f's_add_u32 s{s_nt}, s{s_nt}, s{s_t2}')
    A(f's_mul_i32 s{s_nb}, s{s_nt}, 160')
    A(f's_lshl_b32 s{s_t0}, s{s_tb64}, 1')
    A(f's_lshr_b32 s{s_t1}, s{s_w}, 1')
    A(f's_add_u32 s{s_t0}, s{s_t0}, s{s_t1}')
    A(f's_mul_i32 s{s_ao}, s{s_t0}, {188*512}')
    A(f's_and_b32 s{s_t1}, s{s_w}, 1')
    A(f's_lshl_b32 s{s_t1}, s{s_t1}, 8')
    A(f's_add_u32 s{s_ao}, s{s_ao}, s{s_t1}')
    A(f's_add_u32 s{s_ao}, s{s_ao}, {WS_AF}')
    A(f'v_lshrrev_b32 v{T0}, 4, v{vLane}')
    A(f'v_lshlrev_b32 v{T0}, 9, v{T0}')
    A(f'v_and_b32 v{T0+1}, 15, v{vLane}')
    A(f'v_lshl_add_u32 v{vAct}, v{T0+1}, 4, v{T0}')
    A(f's_mul_i32 s{s_ml}, s{s_w}, 5120')
    for k in range(5):
        A(f'v_add_u32 v{T0}, {64*k}, v{vLane}')
        A(f'v_mul_u32_u24 v{vRho[k]}, 6554, v{T0}')
        A(f'v_lshrrev_b32 v{vRho[k]}, 16, v{vRho[k]}')
        A(f'v_mul_u32_u24 v{T0+1}, 10, v{vRho[k]}')
        A(f'v_sub_u32 v{vCol[k]}, v{T0}, v{T0+1}')
        A(f'v_lshlrev_b32 v{vCol[k]}, 4, v{vCol[k]}')
        A(f'v_bfe_u32 v{T0}, v{vRho[k]}, 3, 1')
        A(f'v_mul_u32_u24 v{T0}, 20, v{T0}')
        A(f'v_lshrrev_b32 v{T0+1}, 4, v{vRho[k]}')
        A(f'v_lshl_add_u32 v{T0}, v{T0+1}, 3, v{T0}')
        A(f'v_and_b32 v{T0+1}, 7, v{vRho[k]}')
        A(f'v_add_u32 v{T0}, v{T0}, v{T0+1}')
        A(f'v_mul_u32_u24 v{vM[k]}, 1280, v{T0}')
        A(f'v_add_u32 v{vM[k]}, v{vM[k]}, v{vCol[k]}')
    A('s_waitcnt lgkmcnt(0)')
    srd(A, sWo, 8, 9, 640*1280)
    srd(A, sWout, 10, 11, 864*1280)
    srd(A, sWs, 14, 15, WS_SIZE)
    srd(A, sOut, 12, 13, 2048*1280)
    W = f's[{sWs}:{sWs+3}]'
    def stage_groups(sg):
        out = []
        if sg < 4:   rows, per, vv, sr = 160 * sg, 40, vM, sWo
        elif sg == 4: rows, per, vv, sr = 0, 160, vL, sWo
        else:        rows, per, vv, sr = 128 * (sg - 5), 32, vY, sWout
        first = [f's_mul_i32 s{s_wo}, s{s_w}, {per*1280}', f's_add_u32 s{s_wo}, s{s_wo}, s{s_nb}', f's_add_u32 s{s_wo}, s{s_wo}, {rows*1280}']
        for k in range(5):
            g = (first if k == 0 else []) + [f's_add_u32 m0, s{s_ml}, {(sg % 8)*SLOT + k*1024}']
            ks = 4 * sg + k
            if k < 4 and ks < 47:
                g.append((f'buffer_load_dwordx4 a[{4*ks}:{4*ks+3}], v{vAct}, {W}, s{s_ao} offen offset:{(ks % 2)*2048}', ('s', sg)))
                if ks % 2 == 1: g.append(f's_add_u32 s{s_ao}, s{s_ao}, 4096')
            g.append((f'buffer_load_dwordx4 v{vv[k]}, s[{sr}:{sr+3}], s{s_wo} offen lds', ('s', sg)))
            out.append(g)
        return out
    def emit_group(g):
        for x in g:
            if isinstance(x, tuple): A(x[0], x[1])
            else: A(x)
    for sg in range(4):
        for g in stage_groups(sg): emit_group(g)
    for k in range(5):
        A(f'v_bfe_u32 v{T0}, v{vRho[k]}, 2, 2')
        A(f'v_mul_u32_u24 v{T0}, 40, v{T0}')
        A(f'v_lshrrev_b32 v{T0+1}, 4, v{vRho[k]}')
        A(f'v_mul_u32_u24 v{T0+1}, 20, v{T0+1}')
        A(f'v_and_b32 v{T0+2}, 3, v{vRho[k]}')
        A(f'v_add3_u32 v{T0}, v{T0}, v{T0+1}, v{T0+2}')
        A(f'v_add_u32 v{T0}, 16, v{T0}')
        A(f'v_mul_u32_u24 v{vL[k]}, 1280, v{T0}')
        A(f'v_add_u32 v{vL[k]}, v{vL[k]}, v{vCol[k]}')
        A(f'v_bfe_u32 v{T0}, v{vRho[k]}, 3, 1')
        A(f'v_mul_u32_u24 v{T0}, 5120, v{T0}')
        A(f'v_sub_u32 v{vY[k]}, v{vM[k]}, v{T0}')
    for sg in range(4, 6):
        for g in stage_groups(sg): emit_group(g)
    A(f'v_lshrrev_b32 v{T0}, 2, v{vLane}')
    A(f'v_mul_u32_u24 v{T0}, 160, v{T0}')
    A(f'v_and_b32 v{T0+1}, 3, v{vLane}')
    A(f'v_lshl_add_u32 v{vTr[0]}, v{T0+1}, 3, v{T0}')
    A(f'v_add_u32 v{vTr[1]}, {3*SLOT}, v{vTr[0]}')
    A(f'v_add_u32 v{vTr[2]}, {6*SLOT}, v{vTr[0]}')
    seq = [(ks, nb) for ks in range(47) for nb in range(5)]
    extra = []
    def reads(i):
        ks, nb = seq[i]
        sg = ks // 4
        if ks % 4 == 0 and nb == 0:
            A.wait_vm(('s', sg))
            A('s_barrier')
            if sg + 6 < 12: extra.extend(stage_groups(sg + 6))
        slot = sg % 8
        off = (slot % 3) * SLOT + (ks % 4) * 5120 + nb * 32
        r = RING + 4 * (i % NR)
        A(f'ds_read_b64_tr_b16 v[{r}:{r+1}], v{vTr[slot // 3]} offset:{off}', i)
        A(f'ds_read_b64_tr_b16 v[{r+2}:{r+3}], v{vTr[slot // 3]} offset:{off + 2560}', i)
    for i in range(D): reads(i)
    for i, (ks, nb) in enumerate(seq):
        if i % 2 == 0: A.wait_lg([i, i + 1])
        r = RING + 4 * (i % NR); acc = ACC + 4 * nb
        cin = '0' if ks == 0 else f'v[{acc}:{acc+3}]'
        A(f'v_mfma_f32_16x16x32_bf16 v[{acc}:{acc+3}], v[{r}:{r+3}], a[{4*ks}:{4*ks+3}], {cin}')
        if i + D < len(seq): reads(i + D)
        if extra and i % 2 == 1: emit_group(extra.pop(0))
    assert not extra
    base = 7 * SLOT
    A(f'v_and_b32 v{T0}, 15, v{vLane}')
    A(f'v_mul_u32_u24 v{T0}, 176, v{T0}')
    A(f'v_lshrrev_b32 v{T0+1}, 4, v{vLane}')
    A(f'v_lshl_add_u32 v{T0}, v{T0+1}, 3, v{T0}')
    A(f's_add_u32 s{s_t0}, s{s_ml}, {base}')
    A(f'v_add_u32 v{T0}, s{s_t0}, v{T0}')
    for k in range(3):
        A(f'v_mul_u32_u24 v{T0+2+k}, 176, v{vRho[k]}')
        A(f'v_add3_u32 v{T0+2+k}, v{T0+2+k}, v{vCol[k]}, s{s_t0}')
        A(f'v_mul_u32_u24 v{T0+5+k}, 1280, v{vRho[k]}')
        A(f'v_add_u32 v{T0+5+k}, v{T0+5+k}, v{vCol[k]}')
    for nb in range(5):
        acc = ACC + 4 * nb
        A(f'v_cvt_pk_bf16_f32 v{PK+2*nb}, v{acc}, v{acc+1}')
        A(f'v_cvt_pk_bf16_f32 v{PK+2*nb+1}, v{acc+2}, v{acc+3}')
        A(f'ds_write_b64 v{T0}, v[{PK+2*nb}:{PK+2*nb+1}] offset:{nb*32}')
    A(f's_lshl_b32 s{s_t0}, s{s_tb64}, 6')
    A(f's_lshl_b32 s{s_t1}, s{s_w}, 4')
    A(f's_add_u32 s{s_t0}, s{s_t0}, s{s_t1}')
    A(f's_mul_i32 s{s_t0}, s{s_t0}, 1280')
    A(f's_add_u32 s{s_t0}, s{s_t0}, s{s_nb}')
    A('s_waitcnt lgkmcnt(0)')
    for k in range(3): A(f'ds_read_b128 v[{RING+4*k}:{RING+4*k+3}], v{T0+2+k}')
    A('s_waitcnt lgkmcnt(0)')
    for k in range(3):
        if k == 2: A('s_mov_b32 exec_hi, 0')
        A(f'buffer_store_dwordx4 v[{RING+4*k}:{RING+4*k+3}], v{T0+5+k}, s[{sOut}:{sOut+3}], s{s_t0} offen')
    A('K3_end:')
    A('s_endpgm')
    rep = []
    lines = fix_hazards(A.lines, rep)
    return lines, kernel_desc(NAME, NV + 188, NV), f'; @launch kernel={NAME} grid=(256,1,1) block=(256,1,1) lds={LDS}', rep

if __name__ == '__main__':
    l, d, la, rep = gen()
    print(len(l))
    for r in rep: print(r)
```

```python
import sys, importlib
import k1, k2, k3
OUT = 'gated_mix__grouped_kv_mqa__mixer_gmlp__prompt.s'
def build(out=OUT, mods=(k1, k2, k3)):
    parts = [m.gen() for m in mods]
    hdr = open('gated_mix__grouped_kv_mqa__mixer_gmlp__prompt.s.ref').read().split('\n')
    hdr = [l for l in hdr if l.startswith(';') and '@launch' not in l and 'Override' not in l and 'grid=ceil' not in l]
    s = '\n'.join(hdr) + '\n' + '\n'.join(p[2] for p in parts) + '\n'
    s += '.amdgcn_target "amdgcn-amd-amdhsa--gfx950"\n.text\n'
    for p in parts: s += '\n'.join(p[0]) + '\n'
    s += '.section .rodata,"a"\n'
    for p in parts: s += p[1] + '\n'
    open(out, 'w').write(s)
if __name__ == '__main__':
    build()
```
